```python
import torch

def _softmax(x, axis=-1):
    return torch.softmax(x, dim=axis)
def _gelu(x):
    return torch.nn.functional.gelu(x, approximate="tanh")
def _silu(x):
    return torch.nn.functional.silu(x)
def _sigmoid(x):
    return torch.sigmoid(x)
def _layernorm(x, axis=-1, eps=1e-5):
    m = x.mean(dim=axis, keepdim=True)
    v = x.var(dim=axis, keepdim=True, unbiased=False)
    return (x - m) / torch.sqrt(v + eps)
def _scatter_add(tgt, idx, src, axis=0):
    return tgt.clone().index_add_(axis, idx, src)
def _segment_sum(src, seg, n):
    out = torch.zeros((n,) + src.shape[1:], dtype=src.dtype)
    return out.index_add_(0, seg, src)
def _pad(x, pw):
    flat = tuple(v for pair in reversed(pw) for v in pair)
    return torch.nn.functional.pad(x, flat)

kernel_name = 'gated_mix__grouped_kv_mqa__glu_gated_geglu__prompt'

def setup_inputs():

    _w = (lambda a: (lambda t: t.to(torch.bfloat16) if t.is_floating_point() else t)(torch.as_tensor(a)))
    def _A_setup():
        B, S, D, H = 1, 2048, 640, 32
        Dh = D // H
        return {
            "x": _w((lambda *s: torch.randn(*s, dtype=torch.bfloat16) * 0.05)(B, S, D)),
            "wq": _w((lambda *s: torch.randn(*s, dtype=torch.bfloat16) * 0.8)(D, H * Dh)),
            "wk": _w((lambda *s: torch.randn(*s, dtype=torch.bfloat16) * 0.8)(D, Dh)),
            "wv": _w((lambda *s: torch.randn(*s, dtype=torch.bfloat16) * 0.05)(D, Dh)),
            "wo": _w((lambda *s: torch.randn(*s, dtype=torch.bfloat16) * 0.05)(H * Dh, D)),
        }
    _A_in = _A_setup()

    def _B_setup():
        B, S, Dm, Df = 1, 2048, 640, 1536
        return {
            "x": _w((lambda *s: torch.randn(*s, dtype=torch.bfloat16) * 0.05)(B, S, Dm)),
            "w_gate": _w((lambda *s: torch.randn(*s, dtype=torch.bfloat16) * 0.8)(Dm, Df) * (Dm ** -0.5)),
            "w_up": _w((lambda *s: torch.randn(*s, dtype=torch.bfloat16) * 0.8)(Dm, Df) * (Dm ** -0.5)),
            "w_down": _w((lambda *s: torch.randn(*s, dtype=torch.bfloat16) * 0.8)(Df, Dm) * (Df ** -0.5)),
        }
    _B_in = _B_setup()

    return {
        "A_x": _A_in["x"],
        "A_wq": _A_in["wq"],
        "A_wk": _A_in["wk"],
        "A_wv": _A_in["wv"],
        "A_wo": _A_in["wo"],
        "B_x": _B_in["x"],
        "B_w_gate": _B_in["w_gate"],
        "B_w_up": _B_in["w_up"],
        "B_w_down": _B_in["w_down"],
        "gate_w": _w((lambda *s: torch.randn(*s, dtype=torch.bfloat16) * 0.05)(640) * 16.0),
    }

def reference(A_x, A_wq, A_wk, A_wv, A_wo, B_x, B_w_gate, B_w_up, B_w_down, gate_w):
    def _A_ref(x, wq, wk, wv, wo):
        B, S, D = x.shape
        H = 32
        Dh = D // H
        q = (lambda x, *d: x.permute(*d))((x @ wq).reshape(B, S, H, Dh), 0, 2, 1, 3)
        k = x @ wk
        v = x @ wv
        scores = torch.einsum("bhqd,bkd->bhqk", q, k) * (Dh ** -0.5)
        p = _softmax(scores, axis=-1)
        o = torch.einsum("bhqk,bkd->bhqd", p, v)
        return (lambda x, *d: x.permute(*d))(o, 0, 2, 1, 3).reshape(B, S, H * Dh) @ wo

    def _B_ref(x, w_gate, w_up, w_down):
        g = torch.einsum("bsd,df->bsf", x, w_gate)
        u = torch.einsum("bsd,df->bsf", x, w_up)
        h = _gelu(g) * u
        return torch.einsum("bsf,fd->bsd", h, w_down)

    x = A_x
    g = _sigmoid((x * gate_w).sum(-1, keepdims=True))
    a = _A_ref(x, A_wq, A_wk, A_wv, A_wo)
    b = _B_ref(x, B_w_gate, B_w_up, B_w_down)
    return g * a + (1 - g) * b
```

```python
import re

TRANS = ("v_exp_", "v_log_", "v_rcp_", "v_rsq_", "v_sqrt_", "v_sin_", "v_cos_")

def _regs(tok):
    tok = tok.strip()
    if tok.startswith("-"): tok = tok[1:]
    if tok.startswith("|") and tok.endswith("|"): tok = tok[1:-1]
    m = re.fullmatch(r"([vsa])(\d+)", tok)
    if m: return {(m.group(1), int(m.group(2)))}
    m = re.fullmatch(r"([vsa])\[(\d+):(\d+)\]", tok)
    if m: return {(m.group(1), i) for i in range(int(m.group(2)), int(m.group(3)) + 1)}
    if tok in ("vcc", "vcc_lo", "vcc_hi"): return {("vcc", 0)}
    if tok == "m0": return {("m0", 0)}
    if tok in ("exec", "exec_lo", "exec_hi"): return {("exec", 0)}
    return set()

class Ins:
    __slots__ = ("text", "op", "kind", "wr", "rd", "srcc", "passes", "states", "trans", "dpp", "perm", "rdlane",
                 "dlop", "wide_store_data", "ldsdma", "sdwa", "dst_exact", "ab")
    def __init__(self, text):
        self.text = text
        code = text.split(";")[0].strip()
        parts = code.split(None, 1)
        self.op = parts[0]
        rest = parts[1] if len(parts) > 1 else ""
        ops = []
        cur = ""; depth = 0
        for ch in rest:
            if ch == "[": depth += 1
            if ch == "]": depth -= 1
            if ch == "," and depth == 0:
                ops.append(cur.strip()); cur = ""
            else: cur += ch
        if cur.strip(): ops.append(cur.strip())
        mods = ""
        if ops:
            sp = ops[-1].split(None, 1)
            ops[-1] = sp[0]
            if len(sp) > 1: mods = sp[1]
        op = self.op
        self.wr = set(); self.rd = set(); self.srcc = set(); self.passes = 0; self.states = 1
        self.trans = False; self.dpp = False; self.perm = False; self.rdlane = False; self.dlop = False
        self.wide_store_data = set(); self.ldsdma = False; self.sdwa = False; self.dst_exact = None; self.ab = set()
        R = [_regs(o) for o in ops]
        if op == "s_nop":
            self.kind = "nop"; self.states = int(ops[0], 0) + 1
        elif op.startswith("v_mfma"):
            self.kind = "mfma"
            self.wr = R[0]; self.ab = R[1] | R[2]; self.srcc = R[3]; self.rd = self.ab | self.srcc
            self.passes = 8 if "32x32" in op else 4
            self.dst_exact = ops[0]
        elif op.startswith("v_"):
            self.kind = "valu"
            self.trans = op.startswith(TRANS)
            self.dpp = "dpp" in op or "row_" in mods or "quad_perm" in mods
            self.sdwa = "sdwa" in op or "op_sel" in mods
            self.dlop = op.startswith("v_dot")
            if op.startswith("v_permlane"):
                self.perm = True
                self.wr = R[0] | R[1]; self.rd = R[0] | R[1]
            else:
                self.wr = set(R[0])
                k = 1
                if "_co_" in op and not op.startswith("v_cmp"):
                    self.wr |= R[1]; k = 2
                for r in R[k:]: self.rd |= r
                if op.startswith(("v_fmac", "v_mac", "v_dot2c", "v_pk_fmac")) or self.sdwa or self.dpp:
                    self.rd |= R[0]
                if op.startswith("v_cndmask") and len(ops) == 3: self.rd |= {("vcc", 0)}
                if op.startswith(("v_readfirstlane", "v_readlane")): self.rdlane = True
                if op.startswith("v_cmpx"): raise ValueError("no v_cmpx please")
        elif op.startswith("ds_"):
            self.kind = "ds"
            if op.startswith(("ds_read", "ds_bpermute", "ds_permute", "ds_swizzle")) :
                self.wr = R[0]
                for r in R[1:]: self.rd |= r
            else:
                for r in R: self.rd |= r
        elif op.startswith(("buffer_", "global_")):
            self.kind = "vmem"
            lds = re.search(r"\blds\b", mods) is not None or "_lds_" in op
            if lds:
                self.ldsdma = True
                for r in R: self.rd |= r
            elif "load" in op:
                self.wr = R[0]
                for r in R[1:]: self.rd |= r
            else:
                for r in R: self.rd |= r
                if "x3" in op or "x4" in op:
                    self.wide_store_data = R[0] if op.startswith("buffer_") else R[1]
                if "atomic" in op and "sc0" in mods:
                    self.wr = R[0]
        elif op.startswith("s_"):
            self.kind = "salu"
            if op.startswith(("s_cmp", "s_cbranch", "s_branch", "s_waitcnt", "s_barrier", "s_endpgm", "s_setprio", "s_sleep", "s_bitcmp")):
                for r in R: self.rd |= r
            else:
                if R: self.wr = set(R[0])
                for r in R[1:]: self.rd |= r
                if "saveexec" in op: self.wr |= {("exec", 0)}
        else:
            raise ValueError("unknown instruction: " + text)

def need(prod, cons):
    n = 0
    vw = {r for r in prod.wr if r[0] in "va" and r[0] != "vcc"}
    vw = {r for r in prod.wr if r[0] in ("v", "a")}
    sw = {r for r in prod.wr if r[0] in ("s", "vcc")}
    if prod.kind == "valu":
        if cons.kind == "mfma" and vw & cons.rd: n = max(n, 3 if prod.dlop else 2)
        if cons.kind == "valu":
            if prod.trans and not cons.trans and vw & cons.rd: n = max(n, 1)
            if cons.dpp and vw & cons.rd: n = max(n, 2)
            if cons.perm and vw & cons.rd: n = max(n, 2)
            if cons.rdlane and vw & cons.rd: n = max(n, 1)
            if prod.sdwa and vw & (cons.rd | cons.wr): n = max(n, 1)
            if sw & cons.rd: n = max(n, 4 if cons.rdlane else 2)
            if prod.dlop and vw & (cons.rd | cons.wr): n = max(n, 3)
        if prod.dlop and cons.kind in ("ds", "vmem") and vw & (cons.rd | cons.wr): n = max(n, 3)
        if cons.kind == "vmem" and sw & cons.rd: n = max(n, 5)
        if cons.kind == "salu" and sw & cons.rd: n = max(n, 2)
    if prod.kind == "mfma":
        big = 12 if prod.passes == 8 else 8
        if cons.kind == "mfma":
            if vw & cons.ab: n = max(n, big)
            if vw & cons.srcc:
                if not (cons.srcc == vw and cons.passes == prod.passes): n = max(n, big - 2)
        elif cons.kind in ("valu", "ds", "vmem"):
            if vw & (cons.rd | cons.wr): n = max(n, big)
        if cons.kind == "valu" and prod.srcc & cons.wr: n = max(n, 7 if prod.passes == 8 else 3)
    if prod.kind == "salu" and ("m0", 0) in prod.wr and cons.ldsdma: n = max(n, 1)
    if prod.wide_store_data and prod.wide_store_data & cons.wr:
        n = max(n, 2 if cons.kind == "valu" else 1)
    return n

class Asm:
    def __init__(self):
        self.lines = []
    def e(self, text):
        for t in text.strip().split("\n"):
            t = t.strip()
            if not t: continue
            if t.startswith(";"): self.lines.append(("c", t))
            elif t.endswith(":") or t.startswith("."): self.lines.append(("l", t))
            else: self.lines.append(("i", t))
    def label(self, name): self.lines.append(("l", name + ":"))
    def render(self, stats=None):
        out = []
        hist = []
        nn = 0
        for kind, t in self.lines:
            if kind != "i":
                out.append(t if kind == "l" else "\t" + t)
                continue
            ins = Ins(t)
            req = 0; dist = 0
            for p in reversed(hist):
                r = need(p, ins) - dist
                if r > req: req = r
                dist += p.states
                if dist > 20: break
            while req > 0:
                k = min(req, 16)
                nop = Ins("s_nop %d" % (k - 1))
                out.append("\ts_nop %d" % (k - 1)); hist.append(nop); req -= k; nn += 1
            out.append("\t" + t)
            hist.append(ins)
            if ins.op in ("s_branch", "s_endpgm"):
                hist = []
            if len(hist) > 40: hist = hist[-40:]
        if stats is not None: stats["nops"] = nn
        return "\n".join(out) + "\n"
```

```python
import sys, math, struct
sys.path.insert(0, "gen")
from asmlib import Asm

def f32(x): return "0x%08x" % struct.unpack("<I", struct.pack("<f", x))[0]

WS_Q = 0x000000
WS_H = 0x300000
WS_KV = 0x900000
WS_KMAX = 0x940000
WS_G = 0x941000
WS_O = 0xA00000
WS_B = 0xD00000
KVT = 3584
QSCALE = math.log2(math.e) / math.sqrt(20.0)

def vr(a, n): return "v[%d:%d]" % (a, a + n - 1)

def srd(A, d, lo, hi, size):
    if lo != "s%d" % d: A.e("s_mov_b32 s%d, %s" % (d, lo))
    if hi != "s%d" % (d + 1): A.e("s_mov_b32 s%d, %s" % (d + 1, hi))
    A.e("s_mov_b32 s%d, %s" % (d + 2, size))
    A.e("s_mov_b32 s%d, 0x00020000" % (d + 3))

def srd_off(A, d, base, off, size):
    A.e("s_add_u32 s%d, s%d, %s" % (d, base, off))
    A.e("s_addc_u32 s%d, s%d, 0" % (d + 1, base + 1))
    A.e("s_mov_b32 s%d, %s" % (d + 2, size))
    A.e("s_mov_b32 s%d, 0x00020000" % (d + 3))

def kernel_head(A, name):
    A.e(".p2align 8")
    A.e(".globl %s" % name)
    A.e(".type %s,@function" % name)
    A.label(name)

def descriptor(name, nvgpr, nsgpr=96):
    return """.p2align 6
.amdhsa_kernel %s
  .amdhsa_next_free_vgpr %d
  .amdhsa_next_free_sgpr %d
  .amdhsa_accum_offset %d
  .amdhsa_group_segment_fixed_size 0
  .amdhsa_kernarg_size 104
  .amdhsa_user_sgpr_count 2
  .amdhsa_user_sgpr_kernarg_segment_ptr 1
  .amdhsa_system_sgpr_workgroup_id_x 1
.end_amdhsa_kernel
""" % (name, nvgpr, nsgpr, nvgpr)

XRING = 0
WRING = 49152
L1_LDS = 49152 + 98304

def gen_l1(A):
    name = "proj_kernel"
    kernel_head(A, name)
    e = A.e
    e("s_cmp_ge_u32 s2, 256")
    e("s_cbranch_scc1 L1_exit")
    e("s_load_dwordx4 s[32:35], s[0:1], 0")
    e("s_load_dwordx4 s[36:39], s[0:1], 16")
    e("s_load_dwordx4 s[40:43], s[0:1], 48")
    e("s_load_dwordx2 s[44:45], s[0:1], 72")
    e("s_load_dwordx2 s[46:47], s[0:1], 96")
    e("v_lshrrev_b32 v10, 6, v0")
    e("v_and_b32 v11, 63, v0")
    e("v_readfirstlane_b32 s16, v10")
    e("s_and_b32 s18, s2, 1")
    e("s_lshl_b32 s18, s18, 3")
    e("s_bfe_u32 s19, s2, 0x30003")
    e("s_add_u32 s18, s18, s19")
    e("s_bfe_u32 s19, s2, 0x20001")
    e("s_lshl_b32 s19, s19, 2")
    e("s_lshr_b32 s20, s2, 6")
    e("s_add_u32 s19, s19, s20")
    e("s_and_b32 s28, s16, 1")
    e("s_lshr_b32 s29, s16, 1")
    e("v_and_b32 v12, 31, v11")
    e("v_lshrrev_b32 v13, 5, v11")
    e("v_bfe_u32 v14, v11, 1, 3")
    e("v_xor_b32 v14, v14, v13")
    e("s_lshl_b32 s21, s28, 13")
    e("v_lshlrev_b32 v15, 7, v12")
    e("v_add_u32 v15, s21, v15")
    for ks in range(4):
        e("v_xor_b32 v56, %d, v14" % (2 * ks))
        e("v_lshl_add_u32 v%d, v56, 4, v15" % (1 + ks))
    e("v_lshrrev_b32 v56, 3, v11")
    e("s_lshl_b32 s21, s16, 4")
    e("v_add_u32 v56, s21, v56")
    e("v_mul_u32_u24 v56, 1280, v56")
    e("v_and_b32 v57, 7, v11")
    e("v_lshrrev_b32 v58, 4, v11")
    e("v_xor_b32 v57, v57, v58")
    e("v_lshl_add_u32 v7, v57, 4, v56")
    e("v_xor_b32 v57, 4, v57")
    e("v_lshl_add_u32 v8, v57, 4, v56")
    e("v_add_u32 v8, %d, v8" % (8 * 1280))
    e("s_lshl_b32 s17, s16, 11")
    e("s_waitcnt lgkmcnt(0)")
    e("s_mul_i32 s21, s18, %d" % (128 * 1280))
    srd_off(A, 4, 32, "s21", 128 * 1280)
    e("s_cmp_eq_u32 s19, 15")
    e("s_cbranch_scc1 L1_kv")
    e("s_cmp_ge_u32 s19, 12")
    e("s_cbranch_scc1 L1_qsetup")
    e("s_lshl_b32 s21, s19, 8")
    e("s_sub_u32 s22, %d, s21" % (640 * 3072))
    srd_off(A, 8, 40, "s21", "s22")
    srd_off(A, 12, 42, "s21", "s22")
    e("s_movk_i32 s30, 3072")
    e("s_branch L1_main")
    A.label("L1_qsetup")
    e("s_sub_u32 s21, s19, 12")
    e("s_lshl_b32 s21, s21, 9")
    e("s_sub_u32 s22, %d, s21" % (640 * 1280))
    srd_off(A, 8, 34, "s21", "s22")
    e("s_add_u32 s21, s21, 256")
    e("s_sub_u32 s22, s22, 256")
    srd_off(A, 12, 34, "s21", "s22")
    e("s_movk_i32 s30, 1280")
    A.label("L1_main")
    e("s_lshl_b32 s21, s16, 3")
    e("v_add_u32 v56, s21, v58")
    e("v_mul_u32_u24 v56, s30, v56")
    e("v_and_b32 v57, 15, v11")
    e("v_lshlrev_b32 v59, 2, v58")
    e("v_xor_b32 v57, v57, v59")
    e("v_lshl_add_u32 v9, v57, 4, v56")
    e("v_bfe_u32 v56, v11, 2, 2")
    e("v_lshl_add_u32 v57, v13, 3, v56")
    e("v_lshlrev_b32 v57, 8, v57")
    e("v_xor_b32 v56, s29, v56")
    e("v_lshl_add_u32 v57, v56, 6, v57")
    e("v_and_b32 v56, 1, v11")
    e("v_lshl_add_u32 v57, v56, 5, v57")
    e("v_bfe_u32 v56, v11, 4, 1")
    e("v_lshl_add_u32 v57, v56, 4, v57")
    e("v_bfe_u32 v56, v11, 1, 1")
    e("v_lshl_add_u32 v57, v56, 3, v57")
    e("v_add_u32 v5, %d, v57" % WRING)
    e("v_add_u32 v6, %d, v57" % (WRING + 65536))
    e("s_lshl_b32 s31, s30, 6")
    e("s_lshl_b32 s23, s30, 2")
    e("s_mov_b32 s20, 0")
    e("s_mov_b32 s21, 0")
    e("s_mov_b32 s22, s23")

    def dma_list(st):
        r = st % 3
        L = []
        L.append(("s_add_u32 m0, s17, %d" % (XRING + r * 16384), "buffer_load_dwordx4 v7, s[4:7], s20 offen lds"))
        L.append(("s_add_u32 m0, s17, %d" % (XRING + r * 16384 + 1024), "buffer_load_dwordx4 v8, s[4:7], s20 offen lds"))
        L.append(("s_add_u32 m0, s17, %d" % (WRING + r * 32768), "buffer_load_dwordx4 v9, s[8:11], s21 offen lds"))
        L.append(("s_add_u32 m0, s17, %d" % (WRING + r * 32768 + 1024), "buffer_load_dwordx4 v9, s[8:11], s22 offen lds"))
        L.append(("s_add_u32 m0, s17, %d" % (WRING + r * 32768 + 16384), "buffer_load_dwordx4 v9, s[12:15], s21 offen lds"))
        L.append(("s_add_u32 m0, s17, %d" % (WRING + r * 32768 + 16384 + 1024), "buffer_load_dwordx4 v9, s[12:15], s22 offen lds"))
        return L
    def dma_adv():
        e("s_add_u32 s20, s20, 128")
        e("s_add_u32 s21, s21, s31")
        e("s_add_u32 s22, s22, s31")
    def reads(st, ks, b):
        r = st % 3
        xb = 16 + 16 * b; wb = 24 + 16 * b
        for nt in range(2):
            e("ds_read_b128 %s, v%d offset:%d" % (vr(xb + 4 * nt, 4), 1 + ks, XRING + r * 16384 + nt * 4096))
        for mt in range(2):
            off = r * 32768 + mt * 16384 + ks * 4096
            reg = 5
            if off >= 65536: off -= 65536; reg = 6
            for h in range(2):
                e("ds_read_b64_tr_b16 %s, v%d offset:%d" % (vr(wb + 4 * mt + 2 * h, 2), reg, off + h * 1024))
    def mfma(i, b, first):
        mt, nt = i // 2, i % 2
        xb = 16 + 16 * b; wb = 24 + 16 * b
        acc = vr(64 + 16 * i, 16)
        e("v_mfma_f32_32x32x16_bf16 %s, %s, %s, %s" % (acc, vr(wb + 4 * mt, 4), vr(xb + 4 * nt, 4), "0" if first else acc))
    for st in range(3):
        for a, b in dma_list(st):
            e(a); e(b)
        dma_adv()
    e("s_waitcnt vmcnt(12)")
    e("s_barrier")
    reads(0, 0, 0)
    NST = 10
    for st in range(NST):
        for ks in range(4):
            b = ks % 2
            first = (st == 0 and ks == 0)
            if ks < 3:
                reads(st, ks + 1, 1 - b)
                e("s_waitcnt lgkmcnt(6)")
                for i in range(4): mfma(i, b, first)
            else:
                e("s_waitcnt lgkmcnt(0)")
                mfma(0, b, False); mfma(1, b, False)
                if st + 1 < NST:
                    e("s_waitcnt vmcnt(%d)" % (6 if st + 2 < NST else 0))
                    e("s_barrier")
                    reads(st + 1, 0, 1 - b)
                mfma(2, b, False)
                if st + 3 < NST:
                    L = dma_list(st + 3)
                    for a, bb in L[:3]: e(a); e(bb)
                mfma(3, b, False)
                if st + 3 < NST:
                    for a, bb in L[3:]: e(a); e(bb)
                    dma_adv()
    e("s_cmp_ge_u32 s19, 12")
    e("s_cbranch_scc1 L1_qepi")
    e("s_lshl_b32 s21, s18, 3")
    e("s_lshl_b32 s22, s28, 2")
    e("s_add_u32 s21, s21, s22")
    e("s_mul_i32 s21, s21, 48")
    e("s_lshl_b32 s22, s19, 2")
    e("s_add_u32 s21, s21, s22")
    e("s_add_u32 s21, s21, s29")
    e("s_lshl_b32 s21, s21, 10")
    e("s_add_u32 s22, s21, %d" % (2 * 49152))
    srd_off(A, 24, 46, WS_H, 128 * 49152)
    e("v_bfe_u32 v56, v11, 4, 1")
    e("v_mul_u32_u24 v56, 49152, v56")
    e("v_lshl_add_u32 v56, v13, 9, v56")
    e("v_and_b32 v57, 15, v11")
    e("v_lshl_add_u32 v1, v57, 4, v56")
    c0 = -2.0 * math.sqrt(2.0 / math.pi) * math.log2(math.e)
    c1 = c0 * 0.044715
    e("v_mov_b32 v2, %s" % f32(c0))
    for nt in range(2):
        G = 64 + 16 * nt; U = 96 + 16 * nt
        for half in range(2):
            rs = range(8 * half, 8 * half + 8)
            T = 16
            for j, r in enumerate(rs): e("v_mul_f32 v%d, v%d, v%d" % (T + j, G + r, G + r))
            for j, r in enumerate(rs): e("v_fmamk_f32 v%d, v%d, %s, v2" % (T + j, T + j, f32(c1)))
            for j, r in enumerate(rs): e("v_mul_f32 v%d, v%d, v%d" % (T + j, T + j, G + r))
            for j, r in enumerate(rs): e("v_exp_f32 v%d, v%d" % (T + j, T + j))
            for j, r in enumerate(rs): e("v_mul_f32 v%d, v%d, v%d" % (U + r, U + r, G + r))
            for j, r in enumerate(rs): e("v_add_f32 v%d, 1.0, v%d" % (T + j, T + j))
            for j, r in enumerate(rs): e("v_rcp_f32 v%d, v%d" % (T + j, T + j))
            for j, r in enumerate(rs): e("v_mul_f32 v%d, v%d, v%d" % (T + j, T + j, U + r))
            D = 32 + 4 * (2 * nt + half)
            for j in range(4): e("v_cvt_pk_bf16_f32 v%d, v%d, v%d" % (D + j, T + 2 * j, T + 2 * j + 1))
            e("buffer_store_dwordx4 %s, v1, s[24:27], s%d offen offset:%d" % (vr(D, 4), 21 + nt, 256 * half))
    e("s_endpgm")
    A.label("L1_qepi")
    e("s_nop 7")
    e("s_lshl_b32 s21, s18, 1")
    e("s_add_u32 s21, s21, s28")
    e("s_mul_i32 s21, s21, %d" % (64 * 1280))
    e("s_sub_u32 s22, s19, 12")
    e("s_lshl_b32 s22, s22, 9")
    e("s_add_u32 s21, s21, s22")
    e("s_lshl_b32 s22, s29, 6")
    e("s_add_u32 s21, s21, s22")
    e("s_add_u32 s22, s21, %d" % (32 * 1280))
    srd_off(A, 24, 46, WS_Q, 2048 * 1280)
    e("v_mul_u32_u24 v56, 1280, v12")
    e("v_lshl_add_u32 v1, v13, 5, v56")
    e("v_mov_b32 v2, %s" % f32(QSCALE))
    for mt in range(2):
        if mt == 1:
            e("s_cmp_eq_u32 s19, 14")
            e("s_cbranch_scc1 L1_exit")
        for nt in range(2):
            Ac = 64 + 16 * (2 * mt + nt)
            for r in range(16): e("v_mul_f32 v%d, v%d, v2" % (Ac + r, Ac + r))
            D = 16 + 8 * (2 * mt + nt)
            for j in range(8): e("v_cvt_pk_bf16_f32 v%d, v%d, v%d" % (D + j, Ac + 2 * j, Ac + 2 * j + 1))
            for half in range(2):
                e("buffer_store_dwordx4 %s, v1, s[24:27], s%d offen offset:%d" % (vr(D + 4 * half, 4), 21 + nt, 256 * mt + 16 * half))
    A.label("L1_exit")
    e("s_endpgm")

    A.label("L1_kv")
    e("s_cmp_ge_u32 s16, 6")
    e("s_cbranch_scc1 L1_kv_gw")
    e("s_cmp_ge_u32 s16, 3")
    e("s_cselect_b32 s8, s38, s36")
    e("s_cselect_b32 s9, s39, s37")
    e("s_cselect_b32 s22, 3, 0")
    e("s_cselect_b32 s23, 4096, 0")
    e("s_sub_u32 s22, s16, s22")
    e("s_lshl_b32 s21, s22, 10")
    e("s_add_u32 s23, s23, s21")
    e("s_mov_b32 s10, %d" % (640 * 40))
    e("s_mov_b32 s11, 0x00020000")
    e("s_movk_i32 s31, 2560")
    e("s_branch L1_kv_go")
    A.label("L1_kv_gw")
    srd(A, 8, "s44", "s45", 1280)
    e("s_mov_b32 s21, 0")
    e("s_movk_i32 s23, 8192")
    e("s_movk_i32 s31, 128")
    A.label("L1_kv_go")
    e("v_lshlrev_b32 v9, 4, v11")
    KT = 0 | (2 << 4) | (1 << 8) | (3 << 12) | (4 << 16)
    VT = 0 | (3 << 4) | (1 << 8) | (4 << 12) | (2 << 16)
    e("s_and_b32 s22, s29, 1")
    e("s_cmp_eq_u32 s22, 1")
    e("s_cselect_b32 s30, 0x%x, 0x%x" % (VT, VT) if False else "s_mov_b32 s30, 0x%x" % KT)
    e("s_cselect_b32 s30, 0x%x, s30" % VT)
    e("s_lshl_b32 s22, s22, 12")
    e("v_bfe_u32 v56, v11, 4, 1")
    e("v_and_b32 v57, 3, v11")
    e("v_lshl_add_u32 v56, v56, 2, v57")
    e("v_lshlrev_b32 v56, 2, v56")
    e("v_lshrrev_b32 v56, v56, s30")
    e("v_and_b32 v56, 7, v56")
    e("v_bfe_u32 v57, v11, 2, 2")
    e("v_lshl_add_u32 v57, v13, 3, v57")
    e("v_mul_u32_u24 v57, 40, v57")
    e("v_lshl_add_u32 v57, v56, 3, v57")
    e("v_add_u32 v57, s22, v57")
    e("v_add_u32 v5, %d, v57" % WRING)
    e("v_lshlrev_b32 v6, 4, v13")
    e("v_add_u32 v6, %d, v6" % (WRING + 8192))
    e("s_mov_b32 s20, 0")
    KR = 16384
    def kdma(st):
        r = st % 3
        e("s_add_u32 m0, s17, %d" % (XRING + r * 16384)); e("buffer_load_dwordx4 v7, s[4:7], s20 offen lds")
        e("s_add_u32 m0, s17, %d" % (XRING + r * 16384 + 1024)); e("buffer_load_dwordx4 v8, s[4:7], s20 offen lds")
        e("s_add_u32 m0, s23, %d" % (WRING + r * KR)); e("buffer_load_dwordx4 v9, s[8:11], s21 offen lds")
        e("s_add_u32 s20, s20, 128")
        e("s_add_u32 s21, s21, s31")
    def kreads(st, ks, b):
        r = st % 3
        xb = 16 + 16 * b; wb = 24 + 16 * b
        for nt in range(2):
            e("ds_read_b128 %s, v%d offset:%d" % (vr(xb + 4 * nt, 4), 1 + ks, XRING + r * 16384 + nt * 4096))
        for h in range(2):
            e("ds_read_b64_tr_b16 %s, v5 offset:%d" % (vr(wb + 2 * h, 2), r * KR + ks * 640 + h * 160))
        e("ds_read_b128 %s, v6 offset:%d" % (vr(wb + 4, 4), r * KR + ks * 32))
    def kmfma(b, first):
        xb = 16 + 16 * b; wb = 24 + 16 * b
        for nt in range(2):
            for kind in range(3):
                acc = vr(64 + 16 * (2 * kind + nt), 16)
                x = vr(xb + 4 * nt, 4)
                w = vr(wb + (4 if kind == 2 else 0), 4)
                a, bb = (x, w) if kind == 1 else (w, x)
                e("v_mfma_f32_32x32x16_bf16 %s, %s, %s, %s" % (acc, a, bb, "0" if first else acc))
    for st in range(3): kdma(st)
    e("s_waitcnt vmcnt(6)")
    e("s_barrier")
    kreads(0, 0, 0)
    for st in range(NST):
        for ks in range(4):
            b = ks % 2
            if ks < 3:
                kreads(st, ks + 1, 1 - b)
                e("s_waitcnt lgkmcnt(5)")
            else:
                e("s_waitcnt lgkmcnt(0)")
                if st + 1 < NST:
                    e("s_waitcnt vmcnt(%d)" % (3 if st + 2 < NST else 0))
                    e("s_barrier")
                    kreads(st + 1, 0, 1 - b)
                if st + 3 < NST: kdma(st + 3)
            kmfma(b, st == 0 and ks == 0)
    e("s_lshl_b32 s24, s18, 1")
    e("s_add_u32 s24, s24, s28")
    e("s_mul_i32 s21, s24, %d" % (2 * KVT))
    e("s_add_u32 s22, s21, %d" % KVT)
    e("s_mov_b32 s30, s24")
    srd_off(A, 24, 46, WS_KV, 0x50000)
    e("s_cmp_eq_u32 s29, 1")
    e("s_cbranch_scc1 L1_kv_v")
    e("s_cmp_eq_u32 s29, 2")
    e("s_cbranch_scc1 L1_kv_g")
    e("s_cmp_eq_u32 s29, 3")
    e("s_cbranch_scc1 L1_exit")
    e("v_cmp_gt_u32 vcc, 32, v11")
    e("v_mov_b32 v60, 0")
    for nt in range(2):
        Ac = 64 + 16 * nt; D = 16 + 8 * nt
        for j in range(6): e("v_cvt_pk_bf16_f32 v%d, v%d, v%d" % (D + j, Ac + 2 * j, Ac + 2 * j + 1))
        e("v_cndmask_b32 v%d, 0, v%d, vcc" % (D + 4, D + 4))
        e("v_cndmask_b32 v%d, 0, v%d, vcc" % (D + 5, D + 5))
        e("v_mov_b32 v%d, 0x3f803f80" % (D + 6))
        e("v_mov_b32 v%d, 0x00003f80" % (D + 7))
        e("v_mov_b32 v%d, 0" % (56 + nt))
        for j in range(6): e("v_dot2_f32_bf16 v%d, v%d, v%d, v%d" % (56 + nt, D + j, D + j, 56 + nt))
        e("buffer_store_dwordx4 %s, v9, s[24:27], s%d offen" % (vr(D, 4), 21 + nt))
    e("s_mov_b64 exec, 0xffffffff")
    for nt in range(2):
        D = 16 + 8 * nt
        e("buffer_store_dwordx4 %s, v9, s[24:27], s%d offen offset:1024" % (vr(D + 4, 4), 21 + nt))
    e("s_mov_b64 exec, -1")
    for nt in range(2):
        e("v_mov_b32 v58, v%d" % (56 + nt))
        e("v_permlane32_swap_b32 v%d, v58" % (56 + nt))
        e("v_add_f32 v%d, v%d, v58" % (56 + nt, 56 + nt))
    e("v_max_f32 v56, v56, v57")
    for sh in (8, 4, 2, 1):
        e("v_max_f32_dpp v56, v56, v56 row_ror:%d row_mask:0xf bank_mask:0xf" % sh)
    e("v_mov_b32 v58, v56")
    e("v_permlane16_swap_b32 v56, v58")
    e("v_max_f32 v56, v56, v58")
    e("s_lshl_b32 s30, s30, 2")
    e("s_add_u32 s30, s30, %d" % (WS_KMAX - WS_KV))
    e("s_mov_b64 exec, 1")
    e("buffer_store_dword v56, v60, s[24:27], s30 offen")
    e("s_endpgm")
    A.label("L1_kv_v")
    e("s_nop 7")
    e("v_cmp_gt_u32 vcc, 20, v12")
    e("v_and_b32 v56, 27, v12")
    e("v_cmp_eq_u32 s[30:31], 24, v56")
    e("v_mov_b32 v57, 0x3f803f80")
    e("v_cndmask_b32 v57, 0, v57, s[30:31]")
    for nt in range(2):
        Ac = 96 + 16 * nt; D = 16 + 8 * nt
        for j in range(8): e("v_cvt_pk_bf16_f32 v%d, v%d, v%d" % (D + j, Ac + 2 * j, Ac + 2 * j + 1))
        for j in range(8): e("v_cndmask_b32 v%d, v57, v%d, vcc" % (D + j, D + j))
        for a in range(2):
            e("buffer_store_dwordx4 %s, v9, s[24:27], s%d offen offset:%d" % (vr(D + 4 * a, 4), 21 + nt, 1536 + 1024 * a))
    e("s_endpgm")
    A.label("L1_kv_g")
    e("s_nop 7")
    e("s_lshl_b32 s30, s30, 8")
    e("s_add_u32 s30, s30, %d" % (WS_G - WS_KV))
    e("v_cmp_gt_u32 vcc, 32, v11")
    e("v_cndmask_b32 v56, v144, v128, vcc")
    e("v_mul_f32 v56, %s, v56" % f32(-math.log2(math.e)))
    e("v_exp_f32 v56, v56")
    e("v_add_f32 v56, 1.0, v56")
    e("v_rcp_f32 v56, v56")
    e("v_lshlrev_b32 v57, 2, v11")
    e("buffer_store_dword v56, v57, s[24:27], s30 offen")
    e("s_endpgm")
    return name, 160

def g2_setup(A, wave_s, ringbase, ring_per_wave, wsrc, wsize, bsrc_off, ksteps_total, nk):
    e = A.e
    e("s_mul_i32 s21, s19, 160")
    e("s_sub_u32 s22, %d, s21" % wsize)
    srd_off(A, 4, wsrc, "s21", "s22")
    e("s_mul_i32 s21, s18, %d" % (4 * ksteps_total * 1024))
    e("s_add_u32 s21, s21, %d" % bsrc_off)
    srd_off(A, 8, 46, "s21", 4 * ksteps_total * 1024)
    for p in range(5):
        e("v_add_u32 v8, %d, v11" % (64 * p))
        e("v_mul_u32_u24 v9, 6554, v8")
        e("v_lshrrev_b32 v9, 16, v9")
        e("v_mul_u32_u24 v10, 10, v9")
        e("v_sub_u32 v8, v8, v10")
        e("v_and_b32 v10, 12, v9")
        e("v_lshlrev_b32 v10, 1, v10")
        e("v_and_b32 v12, 3, v9")
        e("v_or_b32 v10, v10, v12")
        e("v_lshrrev_b32 v12, 4, v9")
        e("v_lshl_add_u32 v10, v12, 2, v10")
        e("v_mul_u32_u24 v10, 1280, v10")
        e("v_lshl_add_u32 v%d, v8, 4, v10" % (1 + p))
    e("v_lshlrev_b32 v6, 4, v11")
    e("s_mul_i32 s17, %s, %d" % (wave_s, ring_per_wave))
    e("s_add_u32 s17, s17, %d" % ringbase)
    e("v_lshrrev_b32 v8, 2, v11")
    e("v_mul_u32_u24 v8, 160, v8")
    e("v_and_b32 v9, 3, v11")
    e("v_mul_u32_u24 v9, 40, v9")
    e("v_add3_u32 v7, v8, v9, s17")
    e("s_mul_i32 s20, %s, %d" % (wave_s, nk * 32 * 1280))
    e("s_mul_i32 s21, %s, %d" % (wave_s, nk * 1024))
    for a in range(4):
        e("s_add_u32 s22, %s, %d" % (wave_s, a))
        e("s_and_b32 s22, s22, 3")
        e("s_mul_i32 s22, s22, %d" % (ksteps_total * 1024))
        e("s_add_u32 s%d, s22, s21" % (24 + a))

def g2_loads(A, slot, hf):
    e = A.e
    for p in range(5):
        e("s_add_u32 m0, s17, %d" % (slot * 5120 + p * 1024))
        e("buffer_load_dwordx4 v%d, s[4:7], s20 offen lds" % (1 + p))
    for a in range(4):
        e("buffer_load_dwordx4 %s, v6, s[8:11], s%d offen" % (vr(hf + 4 * a, 4), 24 + a))
    e("s_add_u32 s20, s20, %d" % (32 * 1280))
    for a in range(4): e("s_add_u32 s%d, s%d, 1024" % (24 + a, 24 + a))

def g2_step(A, slot, hf, af, acc, first):
    e = A.e
    for t in range(5):
        for h in range(2):
            e("ds_read_b64_tr_b16 %s, v7 offset:%d" % (vr(af + 4 * t + 2 * h, 2), slot * 5120 + h * 2560 + 8 * t))
    for t in range(5):
        e("s_waitcnt lgkmcnt(%d)" % (8 - 2 * t))
        for a in range(4):
            d = vr(acc + 20 * a + 4 * t, 4)
            e("v_mfma_f32_16x16x32_bf16 %s, %s, %s, %s" % (d, vr(af + 4 * t, 4), vr(hf + 4 * a, 4), "0" if first else d))

def g2_write_partials(A, acc):
    e = A.e
    e("v_add_u32 v8, s17, v6")
    for a in range(1, 4):
        for t in range(5):
            e("ds_write_b128 v8, %s offset:%d" % (vr(acc + 20 * a + 4 * t, 4), (a - 1) * 5120 + t * 1024))
    e("s_waitcnt lgkmcnt(0)")

def g2_reduce(A, wave_s, ringbase, ring_per_wave, acc):
    e = A.e
    for a in range(1, 4):
        e("s_sub_u32 s22, %s, %d" % (wave_s, a))
        e("s_and_b32 s22, s22, 3")
        e("s_mul_i32 s22, s22, %d" % ring_per_wave)
        e("s_add_u32 s22, s22, %d" % ringbase)
        e("v_add_u32 v8, s22, v6")
        for t in range(5):
            e("ds_read_b128 %s, v8 offset:%d" % (vr(acc + 20 * a + 4 * t, 4), (a - 1) * 5120 + t * 1024))
    for a in range(1, 4):
        e("s_waitcnt lgkmcnt(%d)" % (15 - 5 * a))
        for r in range(20): e("v_add_f32 v%d, v%d, v%d" % (acc + r, acc + r, acc + 20 * a + r))

def tile_map(A):
    e = A.e
    e("s_and_b32 s18, s2, 7")
    e("s_lshl_b32 s18, s18, 2")
    e("s_bfe_u32 s19, s2, 0x20003")
    e("s_add_u32 s18, s18, s19")
    e("s_lshr_b32 s19, s2, 5")

CH = 8 * KVT
L2_GR = 3 * CH
L2_LDS = L2_GR + 4 * 15360

def gen_l2(A):
    name = "attn_kernel"
    kernel_head(A, name)
    e = A.e
    e("s_cmp_ge_u32 s2, 256")
    e("s_cbranch_scc1 L2_exit")
    e("s_load_dwordx2 s[46:47], s[0:1], 96")
    e("s_load_dwordx2 s[44:45], s[0:1], 64")
    e("v_lshrrev_b32 v10, 6, v0")
    e("v_and_b32 v11, 63, v0")
    e("v_readfirstlane_b32 s16, v10")
    tile_map(A)
    e("s_waitcnt lgkmcnt(0)")
    e("s_cmp_ge_u32 s16, 8")
    e("s_cbranch_scc1 L2_gemm")
    O = 16; S = (32, 48); P = 64; Q1 = 72; Q2 = 76; K1 = 80; K2 = 84; V0 = 88; V1 = 92
    srd_off(A, 4, 46, WS_KV, 64 * KVT)
    e("v_lshlrev_b32 v1, 4, v11")
    e("s_lshl_b32 s17, s16, 10")
    e("s_mov_b32 s20, s17")
    def kvdma(slot_expr_const, dyn=None):
        for i in range(4):
            if i == 3:
                e("s_cmp_ge_u32 s16, 4")
                lab = "L2_dskip%d" % kvdma.n; kvdma.n += 1
                e("s_cbranch_scc1 %s" % lab)
            if dyn is None:
                e("s_add_u32 m0, s17, %d" % (slot_expr_const + 8192 * i))
            else:
                e("s_add_u32 m0, %s, %d" % (dyn, 8192 * i))
            e("s_add_u32 s21, s20, %d" % (8192 * i))
            e("buffer_load_dwordx4 v1, s[4:7], s21 offen lds")
        A.label(lab)
        e("s_add_u32 s20, s20, %d" % CH)
    kvdma.n = 0
    kvdma(0)
    e("s_lshl_b32 s21, s18, 3")
    e("s_add_u32 s21, s21, s19")
    e("s_mov_b32 s29, s21")
    e("s_mul_i32 s21, s21, %d" % (8 * 1280))
    e("s_mul_i32 s22, s16, 160")
    e("s_add_u32 s21, s21, s22")
    srd_off(A, 8, 46, WS_Q, 2048 * 1280)
    e("v_and_b32 v12, 7, v11")
    e("v_bfe_u32 v13, v11, 3, 2")
    e("v_lshrrev_b32 v14, 5, v11")
    e("v_mul_u32_u24 v2, 1280, v12")
    e("v_mul_u32_u24 v3, 40, v13")
    e("v_add_u32 v2, v2, v3")
    e("v_lshl_add_u32 v3, v14, 4, v2")
    e("buffer_load_dwordx4 %s, v3, s[8:11], s21 offen" % vr(Q1, 4))
    e("buffer_load_dwordx2 %s, v2, s[8:11], s21 offen offset:32" % vr(Q2, 2))
    e("s_add_u32 s22, s46, %d" % WS_KMAX)
    e("s_addc_u32 s23, s47, 0")
    e("s_load_dwordx16 s[48:63], s[22:23], 0")
    e("s_load_dwordx16 s[64:79], s[22:23], 64")
    kvdma(CH)
    for r in range(16): e("v_mov_b32 v%d, 0" % (O + r))
    for r in range(4):
        e("v_mov_b32 v%d, 0" % (P + 4 + r)); e("v_mov_b32 v%d, 0" % (V1 + r))
    e("v_mov_b32 v4, v1")
    e("v_and_b32 v5, 31, v11")
    e("v_lshlrev_b32 v5, 4, v5")
    e("v_add_u32 v5, 1024, v5")
    e("v_add_u32 v6, %d, v4" % CH)
    e("v_add_u32 v7, %d, v5" % CH)
    e("v_mov_b32 v8, v5")
    e("s_waitcnt lgkmcnt(0)")
    for i in range(49, 80): e("s_max_u32 s48, s48, s%d" % i)
    e("v_cmp_gt_u32 vcc, 32, v11")
    e("s_waitcnt vmcnt(3)")
    e("v_cndmask_b32 v%d, 0, v%d, vcc" % (Q2, Q2))
    e("v_cndmask_b32 v%d, 0, v%d, vcc" % (Q2 + 1, Q2 + 1))
    e("v_mov_b32 v9, 0")
    for j in range(6): e("v_dot2_f32_bf16 v9, v%d, v%d, v9" % (Q1 + j, Q1 + j))
    e("v_mov_b32 v10, v9")
    e("v_permlane32_swap_b32 v9, v10")
    e("v_add_f32 v9, v9, v10")
    e("v_mul_f32 v9, s48, v9")
    e("v_sqrt_f32 v9, v9")
    e("v_mul_f32 v9, %s, v9" % f32(-1.01))
    e("v_cvt_pk_bf16_f32 v9, v9, 0")
    e("v_cndmask_b32 v%d, 0, v9, vcc" % (Q2 + 2))
    e("v_mov_b32 v%d, 0" % (Q2 + 3))
    e("s_barrier")
    e("ds_read_b128 %s, v4" % vr(K1, 4))
    e("ds_read_b128 %s, v5" % vr(K2, 4))
    e("ds_read_b128 %s, v4 offset:1536" % vr(V0, 4))
    e("s_waitcnt lgkmcnt(1)")
    e("v_mfma_f32_32x32x16_bf16 %s, %s, %s, 0" % (vr(S[0], 16), vr(K1, 4), vr(Q1, 4)))
    e("v_mfma_f32_32x32x16_bf16 %s, %s, %s, %s" % (vr(S[0], 16), vr(K2, 4), vr(Q2, 4), vr(S[0], 16)))
    e("s_nop 3")
    e("ds_read_b128 %s, v4 offset:%d" % (vr(K1, 4), KVT))
    e("ds_read_b128 %s, v5 offset:%d" % (vr(K2, 4), KVT))
    e("s_mov_b32 s28, 0")
    e("s_mov_b32 s30, %d" % (2 * CH))
    e("s_waitcnt lgkmcnt(0)")
    e("s_nop 7")
    e(".p2align 6")
    A.label("L2_loop")
    def ex(s, i): e("v_exp_f32 v%d, v%d" % (s + i, s + i))
    def cv(s, j): e("v_cvt_pk_bf16_f32 v%d, v%d, v%d" % (P + j, s + 2 * j, s + 2 * j + 1))
    def addr(kind, tile):
        nxt = tile >= 8
        t = tile % 8
        if kind == "K1": return (6 if nxt else 4, t * KVT)
        if kind == "K2": return (7 if nxt else 5, t * KVT)
        if kind == "V0": return (6 if nxt else 4, t * KVT + 1536)
        if kind == "V1": return (6 if nxt else 4, t * KVT + 2560)
    for t in range(8):
        sc = S[t % 2]; sn = S[(t + 1) % 2]
        if t == 6:
            e("s_waitcnt vmcnt(0)")
            e("s_barrier")
        e("s_waitcnt lgkmcnt(3)")
        e("v_mfma_f32_32x32x16_bf16 %s, %s, %s, 0" % (vr(sn, 16), vr(K1, 4), vr(Q1, 4)))
        ex(sc, 0)
        e("ds_read_b128 %s, v%d offset:%d" % ((vr(K1, 4),) + addr("K1", t + 2)))
        for i in range(1, 5): ex(sc, i)
        e("s_waitcnt lgkmcnt(3)")
        e("v_mfma_f32_32x32x16_bf16 %s, %s, %s, %s" % (vr(O, 16), vr(V1, 4), vr(P + 4, 4), vr(O, 16)))
        ex(sc, 5)
        e("ds_read_b128 %s, v%d offset:%d" % ((vr(V1, 4),) + addr("V1", t)))
        ex(sc, 6); ex(sc, 7)
        for j in range(4): cv(sc, j)
        e("s_waitcnt lgkmcnt(3)")
        e("v_mfma_f32_32x32x16_bf16 %s, %s, %s, %s" % (vr(sn, 16), vr(K2, 4), vr(Q2, 4), vr(sn, 16)))
        ex(sc, 8)
        e("ds_read_b128 %s, v%d offset:%d" % ((vr(K2, 4),) + addr("K2", t + 2)))
        for i in range(9, 13): ex(sc, i)
        if t == 6:
            e("s_cmp_ge_u32 s28, 6")
            e("s_cbranch_scc1 L2_nodma")
            e("s_add_u32 s31, s30, s17")
            kvdma(0, "s31")
            A.label("L2_nodma")
        e("s_waitcnt lgkmcnt(3)")
        e("v_mfma_f32_32x32x16_bf16 %s, %s, %s, %s" % (vr(O, 16), vr(V0, 4), vr(P, 4), vr(O, 16)))
        ex(sc, 13)
        e("ds_read_b128 %s, v%d offset:%d" % ((vr(V0, 4),) + addr("V0", t + 1)))
        ex(sc, 14); ex(sc, 15)
        for j in range(4, 8): cv(sc, j)
    e("v_mov_b32 v4, v6")
    e("v_mov_b32 v5, v7")
    e("v_add_u32 v6, s30, v1")
    e("v_add_u32 v7, s30, v8")
    e("s_add_u32 s30, s30, %d" % CH)
    e("s_cmp_eq_u32 s30, %d" % (3 * CH))
    e("s_cselect_b32 s30, 0, s30")
    e("s_add_u32 s28, s28, 1")
    e("s_cmp_lt_u32 s28, 8")
    e("s_cbranch_scc1 L2_loop")
    e("s_waitcnt lgkmcnt(0)")
    e("v_mfma_f32_32x32x16_bf16 %s, %s, %s, %s" % (vr(O, 16), vr(V1, 4), vr(P + 4, 4), vr(O, 16)))
    e("v_mov_b32 v9, %s" % f32(2.0 ** -40))
    e("v_cmp_nge_f32 vcc, v%d, v9" % (O + 12))
    e("s_cmp_eq_u64 vcc, 0")
    e("s_cbranch_scc0 L2_fallback")
    A.label("L2_store")
    e("v_rcp_f32 v9, v%d" % (O + 12))
    e("s_lshr_b32 s21, s29, 1")
    e("s_mul_i32 s21, s21, 20480")
    e("s_and_b32 s22, s29, 1")
    e("s_lshl_b32 s22, s22, 7")
    e("s_add_u32 s21, s21, s22")
    srd_off(A, 8, 46, WS_O, 128 * 20480)
    e("s_mul_i32 s22, s16, 20")
    e("v_mul_u32_u24 v2, 5, v13")
    e("v_mul_u32_u24 v3, 3, v14")
    e("v_add3_u32 v2, v2, v3, s22")
    e("v_lshlrev_b32 v12, 4, v12")
    for r in range(12): e("v_mul_f32 v%d, v%d, v9" % (O + r, O + r))
    for j in range(6): e("v_cvt_pk_bf16_f32 v%d, v%d, v%d" % (P + j, O + 2 * j, O + 2 * j + 1))
    for i in range(3):
        e("v_add_u32 v3, %d, v2" % i)
        e("v_lshrrev_b32 v4, 1, v3")
        e("v_lshl_add_u32 v4, v4, 8, v12")
        e("v_and_b32 v3, 1, v3")
        e("v_lshl_add_u32 v%d, v3, 3, v4" % (5 + i))
    e("buffer_store_dwordx2 %s, v5, s[8:11], s21 offen" % vr(P, 2))
    e("buffer_store_dwordx2 %s, v6, s[8:11], s21 offen" % vr(P + 2, 2))
    e("s_mov_b64 exec, 0xffffffff")
    e("buffer_store_dwordx2 %s, v7, s[8:11], s21 offen" % vr(P + 4, 2))
    A.label("L2_exit")
    e("s_endpgm")
    A.label("L2_fallback")
    e("s_nop 7")
    e("s_nop 7")
    e("v_mov_b32 v%d, 0" % (Q2 + 2))
    e("v_mov_b32 v9, 0xff800000")
    e("s_mov_b32 s20, 0")
    A.label("L2_fb1")
    e("buffer_load_dwordx4 %s, v1, s[4:7], s20 offen" % vr(K1, 4))
    e("buffer_load_dwordx4 %s, v8, s[4:7], s20 offen" % vr(K2, 4))
    e("s_waitcnt vmcnt(0)")
    e("v_mfma_f32_32x32x16_bf16 %s, %s, %s, 0" % (vr(S[0], 16), vr(K1, 4), vr(Q1, 4)))
    e("v_mfma_f32_32x32x16_bf16 %s, %s, %s, %s" % (vr(S[0], 16), vr(K2, 4), vr(Q2, 4), vr(S[0], 16)))
    for j in range(8): e("v_max3_f32 v9, v9, v%d, v%d" % (S[0] + 2 * j, S[0] + 2 * j + 1))
    e("s_add_u32 s20, s20, %d" % KVT)
    e("s_cmp_lt_u32 s20, %d" % (64 * KVT))
    e("s_cbranch_scc1 L2_fb1")
    e("v_mov_b32 v10, v9")
    e("v_permlane32_swap_b32 v9, v10")
    e("v_max_f32 v9, v9, v10")
    e("v_sub_f32 v9, 0, v9")
    e("v_and_b32 v2, 0xffff0000, v9")
    e("v_sub_f32 v9, v9, v2")
    e("v_and_b32 v3, 0xffff0000, v9")
    e("v_sub_f32 v9, v9, v3")
    e("v_lshrrev_b32 v9, 16, v9")
    e("v_lshrrev_b32 v2, 16, v2")
    e("v_or_b32 v2, v2, v3")
    e("v_cmp_gt_u32 vcc, 32, v11")
    e("v_cndmask_b32 v%d, 0, v2, vcc" % (Q2 + 2))
    e("v_cndmask_b32 v%d, 0, v9, vcc" % (Q2 + 3))
    for r in range(16): e("v_mov_b32 v%d, 0" % (O + r))
    e("s_mov_b32 s20, 0")
    A.label("L2_fb2")
    e("buffer_load_dwordx4 %s, v1, s[4:7], s20 offen" % vr(K1, 4))
    e("buffer_load_dwordx4 %s, v8, s[4:7], s20 offen" % vr(K2, 4))
    e("buffer_load_dwordx4 %s, v1, s[4:7], s20 offen offset:1536" % vr(V0, 4))
    e("buffer_load_dwordx4 %s, v1, s[4:7], s20 offen offset:2560" % vr(V1, 4))
    e("s_waitcnt vmcnt(0)")
    e("v_mfma_f32_32x32x16_bf16 %s, %s, %s, 0" % (vr(S[0], 16), vr(K1, 4), vr(Q1, 4)))
    e("v_mfma_f32_32x32x16_bf16 %s, %s, %s, %s" % (vr(S[0], 16), vr(K2, 4), vr(Q2, 4), vr(S[0], 16)))
    for i in range(16): ex(S[0], i)
    for j in range(8): cv(S[0], j)
    e("v_mfma_f32_32x32x16_bf16 %s, %s, %s, %s" % (vr(O, 16), vr(V0, 4), vr(P, 4), vr(O, 16)))
    e("v_mfma_f32_32x32x16_bf16 %s, %s, %s, %s" % (vr(O, 16), vr(V1, 4), vr(P + 4, 4), vr(O, 16)))
    e("s_nop 7")
    e("s_add_u32 s20, s20, %d" % KVT)
    e("s_cmp_lt_u32 s20, %d" % (64 * KVT))
    e("s_cbranch_scc1 L2_fb2")
    e("s_nop 7")
    e("s_nop 7")
    e("s_branch L2_store")
    A.label("L2_gemm")
    e("s_sub_u32 s16, s16, 8")
    g2_setup(A, "s16", L2_GR, 15360, 44, 1536 * 1280, WS_H, 48, 12)
    ACC = 80; HF = 32; AF = 12
    g2_loads(A, 0, HF); g2_loads(A, 1, HF + 16)
    e("s_barrier")
    for kk in range(12):
        if kk + 2 < 12:
            g2_loads(A, (kk + 2) % 3, HF + 16 * ((kk + 2) % 3))
            e("s_waitcnt vmcnt(18)")
        elif kk == 10:
            e("s_waitcnt vmcnt(9)")
        else:
            e("s_waitcnt vmcnt(0)")
        g2_step(A, kk % 3, HF + 16 * (kk % 3), AF, ACC, kk == 0)
        if kk == 11:
            g2_write_partials(A, ACC)
        if kk % 2 == 1:
            e("s_barrier")
    e("s_lshl_b32 s21, s18, 2")
    e("s_add_u32 s21, s21, s16")
    e("s_lshl_b32 s21, s21, 6")
    srd_off(A, 4, 46, WS_G, 8192)
    e("v_and_b32 v9, 15, v11")
    e("v_lshlrev_b32 v9, 2, v9")
    e("buffer_load_dword v10, v9, s[4:7], s21 offen")
    g2_reduce(A, "s16", L2_GR, 15360, ACC)
    e("s_lshl_b32 s21, s18, 3")
    e("s_add_u32 s21, s21, s19")
    e("s_lshl_b32 s21, s21, 2")
    e("s_add_u32 s21, s21, s16")
    e("s_mul_i32 s21, s21, 5120")
    e("s_add_u32 s22, s21, 4096")
    srd_off(A, 8, 46, WS_B, 1024 * 5120)
    e("s_waitcnt vmcnt(0)")
    e("v_sub_f32 v10, 1.0, v10")
    for r in range(20): e("v_mul_f32 v%d, v%d, v10" % (ACC + r, ACC + r))
    for t in range(4):
        e("buffer_store_dwordx4 %s, v6, s[8:11], s21 offen offset:%d" % (vr(ACC + 4 * t, 4), 1024 * t))
    e("buffer_store_dwordx4 %s, v6, s[8:11], s22 offen" % vr(ACC + 16, 4))
    e("s_endpgm")
    return name, 168

L3_LDS = 4 * 25600

def gen_l3(A):
    name = "final_kernel"
    kernel_head(A, name)
    e = A.e
    e("s_cmp_ge_u32 s2, 256")
    e("s_cbranch_scc1 L3_exit")
    e("s_load_dwordx2 s[46:47], s[0:1], 96")
    e("s_load_dwordx2 s[44:45], s[0:1], 32")
    e("s_load_dwordx2 s[42:43], s[0:1], 80")
    e("v_lshrrev_b32 v10, 6, v0")
    e("v_and_b32 v11, 63, v0")
    e("v_readfirstlane_b32 s16, v10")
    tile_map(A)
    e("s_waitcnt lgkmcnt(0)")
    g2_setup(A, "s16", 0, 25600, 44, 640 * 1280, WS_O, 20, 5)
    ACC = 112; HF = 32; AF = 12; BP = 192
    for kk in range(5): g2_loads(A, kk, HF + 16 * kk)
    e("s_lshl_b32 s21, s18, 2")
    e("s_add_u32 s21, s21, s16")
    e("s_mov_b32 s29, s21")
    e("s_lshl_b32 s21, s21, 6")
    srd_off(A, 12, 46, WS_G, 8192)
    e("v_and_b32 v9, 15, v11")
    e("v_lshlrev_b32 v9, 2, v9")
    e("buffer_load_dword v212, v9, s[12:15], s21 offen")
    e("s_lshl_b32 s21, s18, 3")
    e("s_add_u32 s21, s21, s19")
    e("s_lshl_b32 s21, s21, 2")
    e("s_add_u32 s21, s21, s16")
    e("s_mul_i32 s21, s21, 5120")
    e("s_add_u32 s22, s21, 4096")
    srd_off(A, 32, 46, WS_B, 1024 * 5120)
    for t in range(4):
        e("buffer_load_dwordx4 %s, v6, s[32:35], s21 offen offset:%d" % (vr(BP + 4 * t, 4), 1024 * t))
    e("buffer_load_dwordx4 %s, v6, s[32:35], s22 offen" % vr(BP + 16, 4))
    for kk in range(5):
        e("s_waitcnt vmcnt(%d)" % (9 * (4 - kk) + 6))
        g2_step(A, kk, HF + 16 * kk, AF, ACC, kk == 0)
    g2_write_partials(A, ACC)
    e("s_barrier")
    g2_reduce(A, "s16", 0, 25600, ACC)
    e("s_mul_i32 s21, s29, %d" % (16 * 1280))
    e("s_mul_i32 s22, s19, 160")
    e("s_add_u32 s21, s21, s22")
    srd(A, 4, "s42", "s43", 2048 * 1280)
    e("v_and_b32 v9, 15, v11")
    e("v_mul_u32_u24 v9, 1280, v9")
    e("v_lshrrev_b32 v8, 4, v11")
    e("v_mul_u32_u24 v8, 40, v8")
    e("v_add_u32 v9, v9, v8")
    e("s_waitcnt vmcnt(0)")
    for r in range(20): e("v_fma_f32 v%d, v%d, v212, v%d" % (ACC + r, ACC + r, BP + r))
    for j in range(10): e("v_cvt_pk_bf16_f32 v%d, v%d, v%d" % (HF + j, ACC + 2 * j, ACC + 2 * j + 1))
    e("buffer_store_dwordx4 %s, v9, s[4:7], s21 offen" % vr(HF, 4))
    e("buffer_store_dwordx4 %s, v9, s[4:7], s21 offen offset:16" % vr(HF + 4, 4))
    e("buffer_store_dwordx2 %s, v9, s[4:7], s21 offen offset:32" % vr(HF + 8, 2))
    A.label("L3_exit")
    e("s_endpgm")
    return name, 216

def main(out):
    hdr = "; gated mix of MQA attention and GEGLU MLP -- generated by gen/gen.py\n"
    hdr += "; @launch kernel=proj_kernel grid=(256,1,1) block=(512,1,1) lds=%d\n" % L1_LDS
    hdr += "; @launch kernel=attn_kernel grid=(256,1,1) block=(768,1,1) lds=%d\n" % L2_LDS
    hdr += "; @launch kernel=final_kernel grid=(256,1,1) block=(256,1,1) lds=%d\n" % L3_LDS
    hdr += '.amdgcn_target "amdgcn-amd-amdhsa--gfx950"\n.text\n'
    body = ""; desc = '.section .rodata,"a"\n'
    for g in (gen_l1, gen_l2, gen_l3):
        A = Asm()
        name, nv = g(A)
        st = {}
        body += A.render(st)
        desc += descriptor(name, nv)
        print(name, "nops inserted:", st["nops"], file=sys.stderr)
    open(out, "w").write(hdr + body + desc)

if __name__ == "__main__":
    main(sys.argv[1] if len(sys.argv) > 1 else "gated_mix__grouped_kv_mqa__glu_gated_geglu__prompt.s")
```
